```python
import torch

def _softmax(x, axis=-1):
    return torch.softmax(x, dim=axis)
def _gelu(x):
    return torch.nn.functional.gelu(x, approximate="tanh")
def _silu(x):
    return torch.nn.functional.silu(x)
def _sigmoid(x):
    return torch.sigmoid(x)
def _layernorm(x, axis=-1, eps=1e-5):
    m = x.mean(dim=axis, keepdim=True)
    v = x.var(dim=axis, keepdim=True, unbiased=False)
    return (x - m) / torch.sqrt(v + eps)
def _scatter_add(tgt, idx, src, axis=0):
    return tgt.clone().index_add_(axis, idx, src)
def _segment_sum(src, seg, n):
    out = torch.zeros((n,) + src.shape[1:], dtype=src.dtype)
    return out.index_add_(0, seg, src)
def _pad(x, pw):
    flat = tuple(v for pair in reversed(pw) for v in pair)
    return torch.nn.functional.pad(x, flat)

kernel_name = 'standalone__weight_only_int_omniquant__prompt'

def setup_inputs():

    _w = (lambda a: (lambda t: t.to(torch.bfloat16) if t.is_floating_point() else t)(torch.as_tensor(a)))
    B, S, D, F = 1, 2048, 576, 4608
    bits = 8
    G = 64 if 64 > 0 else D
    D = (D // G) * G
    ng = D // G
    qmax = (1 << bits) - 1
    qw = torch.randint(0, qmax + 1, (D, F)).to(torch.int32)
    scales = (torch.abs((lambda *s: torch.randn(*s, dtype=torch.bfloat16) * 0.05)(ng, F)) * 0.05 + 0.01).to(float)
    zeros = torch.randint(0, qmax + 1, (ng, F)).to(float)
    act_scale = (torch.abs((lambda *s: torch.randn(*s, dtype=torch.bfloat16) * 0.05)(D)) * 0.5 + 0.5).to(float)
    return {
        "x": _w((lambda *s: torch.randn(*s, dtype=torch.bfloat16) * 0.05)(B, S, D)),
        "qw": _w(qw),
        "scales": _w(scales),
        "zeros": _w(zeros),
        "act_scale": _w(act_scale),
    }

def reference(x, qw, scales, zeros, act_scale):
    B, S, D = x.shape
    ng, F = scales.shape
    G = D // ng
    s = (lambda x, n, axis: torch.repeat_interleave(x, n, dim=axis))(scales, G, axis=0)
    z = (lambda x, n, axis: torch.repeat_interleave(x, n, dim=axis))(zeros, G, axis=0)
    w = ((lambda x, dt: x.to(dt))(qw, x.dtype) - z) * s
    xs = x * (lambda x, dt: x.to(dt))(act_scale, x.dtype)
    return torch.einsum("bsd,df->bsf", xs, w)
```

```python
KNAME = "standalone__weight_only_int_omniquant__prompt_kernel"
HEADER_COMMENT = """; Kernarg layout for this problem (64 bytes, ptrs only, base s[0:1]):
"""
def wrap(body, grid, block, lds, vgpr, acc, sgpr=102, name=KNAME):
    s = HEADER_COMMENT
    s += f"; @launch grid=({grid},1,1) block=({block},1,1) lds={lds}\n"
    s += '.amdgcn_target "amdgcn-amd-amdhsa--gfx950"\n.text\n'
    s += f".globl {name}\n.p2align 8\n.type {name},@function\n{name}:\n"
    s += body
    s += "\ns_endpgm\n"
    s += '.section .rodata,"a"\n.p2align 6\n'
    s += f""".amdhsa_kernel {name}
  .amdhsa_next_free_vgpr {vgpr}
  .amdhsa_next_free_sgpr {sgpr}
  .amdhsa_accum_offset {acc}
  .amdhsa_group_segment_fixed_size 0
  .amdhsa_kernarg_size 64
  .amdhsa_user_sgpr_count 2
  .amdhsa_user_sgpr_kernarg_segment_ptr 1
  .amdhsa_system_sgpr_workgroup_id_x 1
  .amdhsa_float_denorm_mode_32 3
.end_amdhsa_kernel
"""
    return s

class Asm:
    def __init__(self):
        self.L = []
    def __call__(self, s):
        for line in s.strip("\n").split("\n"):
            self.L.append("    " + line.strip() if not line.strip().endswith(":") else line.strip())
    def text(self):
        return "\n".join(self.L)

M, N, K, G = 2048, 4608, 576, 64
X_BYTES = M*K*2
W_BYTES = K*N*4
S_BYTES = 9*N*2
A_BYTES = K*2
O_BYTES = M*N*2

def srd(a, sreg, ptr, nbytes):
    a(f"s_mov_b32 s{sreg}, s{ptr}")
    a(f"s_mov_b32 s{sreg+1}, s{ptr+1}")
    a(f"s_mov_b32 s{sreg+2}, {nbytes}")
    a(f"s_mov_b32 s{sreg+3}, 0x20000")
```

```python
import sys
from common import *
def gen(fold):
    a = Asm()
    R = 4
    a(f"s_cmp_ge_u32 s2, {144*32}")
    a("s_cbranch_scc1 L_done")
    a("s_load_dwordx8 s[4:11], s[0:1], 0")
    a("s_load_dwordx4 s[12:15], s[0:1], 32")
    a(f"s_mov_b32 s16, {(2**32 + 143)//144}")
    a("s_mul_hi_u32 s17, s2, s16")
    a("s_mul_i32 s18, s17, 144")
    a("s_sub_u32 s18, s2, s18")
    a("s_waitcnt lgkmcnt(0)")
    srd(a, 20, 4, X_BYTES); srd(a, 24, 6, W_BYTES); srd(a, 28, 8, S_BYTES); srd(a, 32, 10, S_BYTES); srd(a, 36, 12, A_BYTES); srd(a, 40, 14, O_BYTES)
    a("v_and_b32 v1, 15, v0")
    a("v_lshrrev_b32 v2, 4, v0")
    a("v_mul_u32_u24 v3, 147456, v2")
    a("s_lshl_b32 s19, s18, 7")
    a("v_lshl_add_u32 v3, v1, 3, v3")
    a("v_add_u32 v3, s19, v3")
    a("s_lshl_b32 s19, s18, 6")
    a("v_lshlrev_b32 v4, 2, v1")
    a("v_add_u32 v4, s19, v4")
    a("s_lshl_b32 s19, s17, 6")
    a("v_add_u32 v5, s19, v1")
    a("v_mul_u32_u24 v6, 9216, v5")
    a("v_mul_u32_u24 v5, 1152, v5")
    a("v_lshl_add_u32 v5, v2, 4, v5")
    a("s_lshl_b32 s19, s18, 6")
    a("v_lshl_add_u32 v6, v2, 4, v6")
    a("v_add_u32 v6, s19, v6")
    a("v_lshlrev_b32 v7, 4, v2")
    ACC = 64
    for i in range(2*R*4):
        a(f"v_mov_b32 v{ACC+i}, 0")
    a("s_mov_b32 s44, 0")
    a("L_loop:")
    a("s_mul_i32 s45, s44, 589824")
    for j in range(8):
        a(f"buffer_load_dwordx2 v[{8+2*j}:{9+2*j}], v3, s[24:27], s45 offen")
        a("s_add_u32 s45, s45, 18432")
    a("s_lshr_b32 s46, s44, 1")
    a("s_mul_i32 s46, s46, 9216")
    a("buffer_load_dword v24, v4, s[28:31], s46 offen")
    a("buffer_load_dword v25, v4, s[32:35], s46 offen")
    a("s_lshl_b32 s47, s44, 6")
    a("buffer_load_dwordx4 v[28:31], v7, s[36:39], s47 offen")
    for r in range(R):
        a(f"buffer_load_dwordx4 v[{32+4*r}:{35+4*r}], v5, s[20:23], s47 offen")
        a("s_add_u32 s47, s47, 18432")
    a("s_waitcnt vmcnt(0)")
    a("v_lshlrev_b32 v48, 16, v24")
    a("v_and_b32 v49, 0xffff0000, v24")
    a("v_lshlrev_b32 v50, 16, v25")
    a("v_and_b32 v51, 0xffff0000, v25")
    for p in range(4):
        a(f"v_lshlrev_b32 v{100+2*p}, 16, v{28+p}")
        a(f"v_and_b32 v{101+2*p}, 0xffff0000, v{28+p}")
    for j in range(8):
        for c in range(2):
            v = 8+2*j+c
            a(f"v_cvt_f32_i32 v{v}, v{v}")
            if not fold:
                a(f"v_cvt_pk_bf16_f32 v{v}, 0, v{v}")
                a(f"v_sub_f32 v{v}, v{v}, v{50+c}")
                a(f"v_cvt_pk_bf16_f32 v{v}, 0, v{v}")
                a(f"v_mul_f32 v{v}, v{v}, v{48+c}")
            else:
                a(f"v_sub_f32 v{v}, v{v}, v{50+c}")
                a(f"v_mul_f32 v{v}, v{v}, v{48+c}")
                if fold == 2:
                    a(f"v_cvt_pk_bf16_f32 v{v}, 0, v{v}")
                a(f"v_mul_f32 v{v}, v{v}, v{100+j}")
    for c in range(2):
        for p in range(4):
            a(f"v_cvt_pk_bf16_f32 v{52+4*c+p}, v{8+2*(2*p)+c}, v{8+2*(2*p+1)+c}")
    if not fold:
        for r in range(R):
            for p in range(4):
                v = 32+4*r+p
                a(f"v_lshlrev_b32 v60, 16, v{v}")
                a(f"v_and_b32 v61, 0xffff0000, v{v}")
                a(f"v_mul_f32 v60, v60, v{100+2*p}")
                a(f"v_mul_f32 v61, v61, v{101+2*p}")
                a(f"v_cvt_pk_bf16_f32 v{v}, v60, v61")
    a("s_nop 1")
    for r in range(R):
        for c in range(2):
            d = ACC + (r*2+c)*4
            a(f"v_mfma_f32_16x16x32_bf16 v[{d}:{d+3}], v[{52+4*c}:{55+4*c}], v[{32+4*r}:{35+4*r}], v[{d}:{d+3}]")
    a("s_add_u32 s44, s44, 1")
    a("s_cmp_lt_u32 s44, 18")
    a("s_cbranch_scc1 L_loop")
    a("s_nop 15")
    a("s_mov_b32 s45, 0")
    for r in range(R):
        for rr in range(4):
            a(f"v_cvt_pk_bf16_f32 v{8+4*r+rr}, v{ACC+(r*2)*4+rr}, v{ACC+(r*2+1)*4+rr}")
        a(f"buffer_store_dwordx4 v[{8+4*r}:{11+4*r}], v6, s[40:43], s45 offen")
        a(f"s_add_u32 s45, s45, {16*9216}")
    a("L_done:")
    return wrap(a.text(), 144*32, 64, 0, 112, 112)
if __name__ == "__main__":
    for f in (0,1,2):
        open(f"simple_f{f}.s", "w").write(gen(f))
```

```python
import sys, struct
from common import *

def f2h(x): return hex(struct.unpack('<I', struct.pack('<f', x))[0])

class Sched(Asm):
    def __init__(self):
        super().__init__()
        self.vm = []; self.lg = []
        self.vm_done = 0; self.lg_done = 0
    def vmem(self, s, tag=None):
        self(s); self.vm.append(tag)
    def lds(self, s, tag=None):
        self(s); self.lg.append(tag)
    def need(self, vm=None, lg=None):
        parts = []
        if vm is not None:
            tags = vm if isinstance(vm, (list, tuple)) and not isinstance(vm[0], str) else [vm]
            idx = max(max(i for i, t in enumerate(self.vm) if t == tg) for tg in tags)
            if idx >= self.vm_done:
                n = min(len(self.vm) - 1 - idx, 63)
                parts.append(f"vmcnt({n})"); self.vm_done = len(self.vm) - n
        if lg is not None:
            if lg == 'all': idx = len(self.lg) - 1
            else:
                tags = lg if isinstance(lg, (list, tuple)) and not isinstance(lg[0], str) else [lg]
                idx = max(max(i for i, t in enumerate(self.lg) if t == tg) for tg in tags)
            if idx >= self.lg_done:
                n = min(len(self.lg) - 1 - idx, 15)
                parts.append(f"lgkmcnt({n})"); self.lg_done = len(self.lg) - n
        if parts: self("s_waitcnt " + " ".join(parts))

KB = 1024
REG_SZ = 36*KB
P1_BASE = 36*KB; P1_SLOT = 16*KB
STG = 116*KB
TAB = 148*KB
TABA = 156*KB
LDS_SIZE = 158*KB

V_W, V_X, V_A0, V_A1, V_A0H, V_A1H, V_STW, V_STR, V_TAB, V_TABA = 1, 2, 3, 4, 5, 6, 7, 8, 9, 10
V_O = 12
RAW = [16, 48, 80]
V_S, V_C, V_AS = 112, 116, 120
V_P = 128
ACC1 = 144
XF = 208
V_T = 240
W8 = RAW[0]
ACC2 = RAW[1]
NAGPR = 256

S_X, S_W, S_SC, S_Z, S_A, S_O = 16, 20, 24, 28, 32, 36
S_JJ = 40
S_XB = 48
S_X2 = 52
S_OB = 53
S_M0 = 54
S_M02 = 55
S_BIG = 56
S_NH, S_MH, S_CB, S_ROW0 = 57, 58, 59, 60
S_O1 = 61
S_T = 64
S_ST = 72

def wfrag(ks, e):
    if ks < 16:
        b = (ks*4 + e)*4
        return f"a[{b}:{b+3}]"
    b = W8 + ((ks-16)*4 + e)*4
    return f"v[{b}:{b+3}]"
def vr(b, n=4): return f"v[{b}:{b+n-1}]"

def gen(trick=True, stflags="nt", stamps=False, codepf=True, NIT=5):
    a = Sched()
    nst = [0]
    def stamp():
        if stamps:
            a(f"s_memtime s[{S_ST+2*nst[0]}:{S_ST+2*nst[0]+1}]"); nst[0] += 1
    SH_S, SH_A = (100, 49) if trick else (0, 0)
    stamp()
    a("s_load_dwordx8 s[4:11], s[0:1], 0")
    a("s_load_dwordx4 s[12:15], s[0:1], 32")
    if stamps: a("s_load_dwordx2 s[62:63], s[0:1], 56")
    a(f"""
    s_and_b32 s{S_T}, s2, 7
    s_lshr_b32 s{S_T+1}, s2, 3
    s_and_b32 s{S_T+2}, s2, 1
    s_add_u32 s{S_T+3}, s{S_T+1}, s{S_T+2}
    s_cmp_ge_u32 s{S_T+3}, {33 if False else 32}
    s_cselect_b32 s{S_T+3}, 1, 0
    """)
    a(f"s_cbranch_scc1 L_done")
    a(f"""
    s_lshr_b32 s{S_T}, s{S_T}, 1
    s_mul_i32 s{S_T}, s{S_T}, 63
    s_lshl_b32 s{S_T+2}, s{S_T+2}, 5
    s_add_u32 s{S_T}, s{S_T}, s{S_T+2}
    s_add_u32 s{S_T}, s{S_T}, s{S_T+1}
    s_mul_i32 s{S_CB}, s{S_T}, 9363
    s_lshr_b32 s{S_CB}, s{S_CB}, 16
    s_mul_i32 s{S_T+1}, s{S_CB}, 7
    s_sub_u32 s{S_T}, s{S_T}, s{S_T+1}
    s_mul_i32 s{S_ROW0}, s{S_T}, 288
    s_add_u32 s{S_ROW0}, s{S_ROW0}, 32
    s_cmp_eq_u32 s{S_T}, 0
    s_cselect_b32 s{S_ROW0}, 0, s{S_ROW0}
    s_cselect_b32 s{S_BIG}, 1, 0
    v_lshrrev_b32 v{V_T}, 6, v0
    v_and_b32 v{V_T+1}, 15, v0
    v_readfirstlane_b32 s{S_T+4}, v{V_T}
    v_bfe_u32 v{V_T+2}, v0, 4, 2
    v_and_b32 v{V_T+3}, 63, v0
    s_nop 0
    s_and_b32 s{S_NH}, s{S_T+4}, 1
    s_lshr_b32 s{S_MH}, s{S_T+4}, 1
    """)
    I, Q, L = V_T+1, V_T+2, V_T+3
    T0, T1 = V_T+4, V_T+5
    a(f"""
    s_lshl_b32 s{S_T}, s{S_CB}, 7
    s_lshl_b32 s{S_T+1}, s{S_NH}, 6
    s_add_u32 s{S_T+1}, s{S_T+1}, s{S_T}
    s_mul_i32 s{S_T+2}, s{S_MH}, {32*18432}
    s_lshl_b32 s{S_T+3}, s{S_T+1}, 2
    s_add_u32 s{S_T+2}, s{S_T+2}, s{S_T+3}
    v_mul_u32_u24 v{V_W}, {8*18432}, v{Q}
    v_lshl_add_u32 v{V_W}, v{I}, 4, v{V_W}
    v_add_u32 v{V_W}, s{S_T+2}, v{V_W}
    s_lshl_b32 s{S_T+3}, s{S_T+1}, 1
    v_lshlrev_b32 v{T0}, 3, v{I}
    v_add_u32 v{T0}, s{S_T+3}, v{T0}
    s_lshl_b32 s{S_T+2}, s{S_MH}, 6
    v_lshlrev_b32 v{T1}, 4, v{Q}
    v_add_u32 v{T1}, s{S_T+2}, v{T1}
    """)
    for j in range(1, 8): a(f"s_mov_b32 s{S_JJ+j}, {j*18432}")
    a(f"""
    v_lshrrev_b32 v{V_T+6}, 3, v{L}
    s_lshl_b32 s{S_T+2}, s{S_NH}, 3
    v_add_u32 v{V_T+6}, s{S_T+2}, v{V_T+6}
    v_lshrrev_b32 v{V_T+7}, 1, v{V_T+6}
    v_xor_b32 v{V_T+7}, v{V_T+7}, v{L}
    v_and_b32 v{V_T+7}, 7, v{V_T+7}
    v_mul_u32_u24 v{V_X}, 1152, v{V_T+6}
    v_lshl_add_u32 v{V_X}, v{V_T+7}, 4, v{V_X}
    s_lshl_b32 s{S_T+2}, s{S_MH}, 6
    s_add_u32 s{S_T+2}, s{S_T+2}, s{S_ROW0}
    s_mul_i32 s{S_XB}, s{S_T+2}, 1152
    s_add_u32 s{S_XB+1}, s{S_XB}, 18432
    s_add_u32 s{S_XB+2}, s{S_XB}, {2*18432}
    s_add_u32 s{S_XB+3}, s{S_XB}, {3*18432}
    s_mul_i32 s{S_O1}, s{S_T+2}, 9216
    s_lshl_b32 s{S_T+2}, s{S_MH}, 4
    s_add_u32 s{S_T+2}, s{S_T+2}, s{S_ROW0}
    s_add_u32 s{S_T+2}, s{S_T+2}, 128
    s_mul_i32 s{S_X2}, s{S_T+2}, 1152
    s_mul_i32 s{S_OB}, s{S_T+2}, 9216
    s_lshl_b32 s{S_T+2}, s{S_NH}, 10
    s_lshl_b32 s{S_M0}, s{S_MH}, 13
    s_add_u32 s{S_M0}, s{S_M0}, s{S_T+2}
    s_mul_i32 s{S_M02}, s{S_MH}, 18432
    s_add_u32 s{S_M02}, s{S_M02}, s{S_T+2}
    """)
    TS, TA = V_T+8, V_T+9
    a(f"""
    v_lshrrev_b32 v{V_T+6}, 5, v0
    v_and_b32 v{V_T+7}, 31, v0
    v_mul_u32_u24 v{TS}, 9216, v{V_T+6}
    v_lshl_add_u32 v{TS}, v{V_T+7}, 3, v{TS}
    s_lshl_b32 s{S_T+2}, s{S_T}, 1
    s_add_u32 s{S_T+2}, s{S_T+2}, 9216
    v_add_u32 v{TS}, s{S_T+2}, v{TS}
    v_lshlrev_b32 v{TA}, 2, v0
    """)
    a("s_waitcnt lgkmcnt(0)")
    srd(a, S_W, 6, W_BYTES); srd(a, S_SC, 8, S_BYTES); srd(a, S_Z, 10, S_BYTES); srd(a, S_A, 12, A_BYTES)
    stamp()
    OWN = V_P
    a.vmem(f"buffer_load_dwordx2 {vr(OWN,2)}, v{T0}, s[{S_SC}:{S_SC+3}], 0 offen", 'own')
    a.vmem(f"buffer_load_dwordx2 {vr(OWN+2,2)}, v{T0}, s[{S_Z}:{S_Z+3}], 0 offen", 'own')
    a.vmem(f"buffer_load_dwordx4 {vr(OWN+4,4)}, v{T1}, s[{S_A}:{S_A+3}], 0 offen", 'own')
    def wload(s, jj):
        so = "0" if jj == 0 else f"s{S_JJ+jj}"
        a.vmem(f"buffer_load_dwordx4 {vr(RAW[s%3]+4*jj)}, v{V_W}, s[{S_W}:{S_W+3}], {so} offen", ('W', s, jj))
    def wadv():
        a(f"v_add_u32 v{V_W}, {64*18432}, v{V_W}")
    def xdma1(s, j):
        lds = P1_BASE + ((s+1) % 5)*P1_SLOT + j*2048 - s*128
        a(f"s_add_u32 m0, s{S_M0}, {lds}")
        return lambda: a.vmem(f"buffer_load_dwordx4 v{V_X}, s[{S_X}:{S_X+3}], s{S_XB+j} offen offset:{s*128} lds", ('x', s))
    def xdma1_all(s):
        for j in range(4):
            f = xdma1(s, j); a("s_nop 0"); f()
    def xdma2(t, s):
        lds = (t % 3)*REG_SZ + s*2048 - s*128
        a(f"s_add_u32 m0, s{S_M02}, {lds}")
        return lambda: a.vmem(f"buffer_load_dwordx4 v{V_X}, s[{S_X}:{S_X+3}], s{S_X2} offen offset:{s*128} lds", ('X2', t))
    for jj in range(8): wload(0, jj)
    wadv()
    srd(a, S_X, 4, X_BYTES)
    xdma1_all(0)
    a.vmem(f"buffer_load_dwordx2 {vr(OWN+8,2)}, v{TS}, s[{S_SC}:{S_SC+3}], 0 offen", 'tab')
    a.vmem(f"buffer_load_dwordx2 {vr(OWN+10,2)}, v{TS}, s[{S_Z}:{S_Z+3}], 0 offen", 'tab')
    a.vmem(f"buffer_load_dword v{OWN+12}, v{TA}, s[{S_A}:{S_A+3}], 0 offen offset:128", 'tab')
    if codepf:
        a(f"s_getpc_b64 s[{S_T+6}:{S_T+7}]")
        a(f"v_lshlrev_b32 v{V_T+10}, 7, v0")
        a(f"v_min_u32 v{V_T+10}, CODE_LEFT, v{V_T+10}")
        a("L_pfref:")
        a.vmem(f"global_load_dword v{V_T+11}, v{V_T+10}, s[{S_T+6}:{S_T+7}]", 'pf')
    for s in (1, 2):
        xdma1_all(s)
        for jj in range(8): wload(s, jj)
        wadv()
    xdma1_all(3)
    srd(a, S_O, 14, O_BYTES)
    a(f"""
    v_lshrrev_b32 v{V_T+6}, 1, v{I}
    v_xor_b32 v{V_T+6}, v{V_T+6}, v{Q}
    v_lshlrev_b32 v{V_T+6}, 4, v{V_T+6}
    v_lshl_add_u32 v{V_A0}, v{I}, 7, v{V_T+6}
    s_lshl_b32 s{S_T+2}, s{S_MH}, 13
    v_add_u32 v{V_A0}, s{S_T+2}, v{V_A0}
    v_xor_b32 v{V_A1}, 64, v{V_A0}
    v_add_u32 v{V_A0H}, 0x10000, v{V_A0}
    v_add_u32 v{V_A1H}, 0x10000, v{V_A1}
    s_lshl_b32 s{S_T+2}, s{S_NH}, 12
    s_add_u32 s{S_T+2}, s{S_T+2}, {STG}
    v_lshlrev_b32 v{V_STR}, 4, v{L}
    v_add_u32 v{V_STR}, s{S_T+2}, v{V_STR}
    s_lshl_b32 s{S_T+2}, s{S_MH}, 13
    v_add_u32 v{V_STW}, s{S_T+2}, v{V_STR}
    s_lshl_b32 s{S_T+2}, s{S_NH}, 8
    s_add_u32 s{S_T+2}, s{S_T+2}, {TAB}
    v_lshlrev_b32 v{V_TAB}, 4, v{I}
    v_add_u32 v{V_TAB}, s{S_T+2}, v{V_TAB}
    s_lshl_b32 s{S_T+2}, s{S_MH}, 7
    s_add_u32 s{S_T+2}, s{S_T+2}, {TABA}
    v_lshlrev_b32 v{V_TABA}, 5, v{Q}
    v_add_u32 v{V_TABA}, s{S_T+2}, v{V_TABA}
    v_mul_u32_u24 v{V_O}, {4*9216}, v{Q}
    v_add_u32 v{V_O}, v{V_O}, v{T0}
    v_add_u32 v{V_O+1}, 9216, v{V_O}
    v_add_u32 v{V_O+2}, {2*9216}, v{V_O}
    v_add_u32 v{V_O+3}, {3*9216}, v{V_O}
    v_lshrrev_b32 v{TS}, 5, v0
    v_and_b32 v{V_T+7}, 31, v0
    v_lshlrev_b32 v{TS}, 10, v{TS}
    v_lshl_add_u32 v{TS}, v{V_T+7}, 4, v{TS}
    v_add_u32 v{TS}, {TAB}, v{TS}
    v_lshlrev_b32 v{TA}, 3, v0
    v_add_u32 v{TA}, {TABA}, v{TA}
    """)
    def unpack_sc(src_s, src_z, dS, dC):
        for p in range(2):
            a(f"v_lshlrev_b32 v{dS+2*p}, 16, v{src_s+p}")
            a(f"v_and_b32 v{dS+2*p+1}, 0xffff0000, v{src_s+p}")
            a(f"v_lshlrev_b32 v{dC+2*p}, 16, v{src_z+p}")
            a(f"v_and_b32 v{dC+2*p+1}, 0xffff0000, v{src_z+p}")
        for e in range(4):
            a(f"v_mul_f32 v{dC+e}, v{dC+e}, v{dS+e}")
        for e in range(4):
            a(f"v_mul_f32 v{dC+e}, {f2h(-2.0**(SH_S-149) if trick else -1.0)}, v{dC+e}")
            if trick: a(f"v_mul_f32 v{dS+e}, {f2h(2.0**SH_S)}, v{dS+e}")
    def unpack_a(src, d, n):
        for p in range(n):
            a(f"v_lshlrev_b32 v{d+2*p}, 16, v{src+p}")
            a(f"v_and_b32 v{d+2*p+1}, 0xffff0000, v{src+p}")
        if trick:
            for p in range(2*n): a(f"v_mul_f32 v{d+p}, {f2h(2.0**(149-SH_S))}, v{d+p}")
    a.need(vm='own')
    stamp()
    unpack_sc(OWN, OWN+2, V_S, V_C)
    unpack_a(OWN+4, V_AS, 4)

    def deq_ops(s, jj):
        r = RAW[s % 3] + 4*jj
        ops = []
        if not trick:
            ops += [f"v_cvt_f32_i32 v{r+e}, v{r+e}" for e in range(4)]
        ops += [f"v_fma_f32 v{r+e}, v{r+e}, v{V_S+e}, v{V_C+e}" for e in range(4)]
        ops += [f"v_mul_f32 v{r+e}, v{r+e}, v{V_AS+jj}" for e in range(4)]
        if jj & 1:
            ops += [f"v_cvt_pk_bf16_f32 v{V_P+4*e+(jj>>1)}, v{r-4+e}, v{r+e}" for e in range(4)]
        return ops
    def stage_write(s):
        for e in range(4):
            a.lds(f"ds_write_b128 v{V_STW}, {vr(V_P+4*e)} offset:{(s&1)*16384 + e*1024}", ('sw', s))
    def tab_read(s):
        a.lds(f"ds_read_b128 {vr(V_S)}, v{V_TAB} offset:{(s-1)*1024}", ('tab', s))
        a.lds(f"ds_read_b128 {vr(V_C)}, v{V_TAB} offset:{(s-1)*1024+512}", ('tab', s))
        a.lds(f"ds_read_b128 {vr(V_AS)}, v{V_TABA} offset:{(s-1)*256}", ('tab', s))
        a.lds(f"ds_read_b128 {vr(V_AS+4)}, v{V_TABA} offset:{(s-1)*256+16}", ('tab', s))
    def xread(dst, kk, off, tag):
        base = (V_A0, V_A1)[kk]
        if off >= 65536: base, off = (V_A0H, V_A1H)[kk], off - 65536
        a.lds(f"ds_read_b128 {vr(dst)}, v{base} offset:{off}", tag)

    a.need(vm='tab')
    stamp()
    unpack_sc(OWN+8, OWN+10, ACC1, ACC1+4)
    unpack_a(OWN+12, ACC1+8, 1)
    a.lds(f"ds_write_b128 v{TS}, {vr(ACC1)}", 'tw')
    a.lds(f"ds_write_b128 v{TS}, {vr(ACC1+4)} offset:512", 'tw')
    a.lds(f"ds_write_b64 v{TA}, {vr(ACC1+8,2)}", 'tw')
    for jj in range(8):
        for op in deq_ops(0, jj): a(op)
        if jj & 1:
            wload(3, jj-1); wload(3, jj)
    wadv()
    stage_write(0)
    a.need(lg='all')
    a("s_barrier")
    stamp()

    def mfma1(s, kk, j, e):
        d = ACC1 + (j*4+e)*4
        c = "0" if (s == 0 and kk == 0) else vr(d)
        a(f"v_mfma_f32_16x16x32_bf16 {vr(d)}, {vr(XF+(kk*4+j)*4)}, {wfrag(2*s+kk, e)}, {c}")
    def p1_reads(s):
        if s == 0: tab_read(1)
        for kk in range(2):
            for e in range(4):
                a.lds(f"ds_read_b128 {wfrag(2*s+kk, e)}, v{V_STR} offset:{(s&1)*16384 + kk*8192 + e*1024}", ('wf', s, kk))
            for j in range(4):
                xread(XF+(kk*4+j)*4, kk, P1_BASE + ((s+1) % 5)*P1_SLOT + j*2048, ('xf', s, kk, j))
    def x2read(t, f):
        xread(XF + X2SET(t, f)*4, f & 1, (t % 3)*REG_SZ + (f >> 1)*2048, ('x2', t, f))
    def X2SET(t, f): return (t*18 + f) % 6

    for s in range(9):
        p1_reads(s)
        M = [(kk, j, e) for kk in range(2) for j in range(4) for e in range(4)]
        def emit_m(n):
            for _ in range(n):
                if not M: return
                kk, j, e = M.pop(0)
                if e == 0: a.need(lg=[('wf', s, kk), ('xf', s, kk, j)])
                mfma1(s, kk, j, e)
        dm = []
        if s + 4 <= 8: dm = [(lambda j=j: xdma1(s+4, j)) for j in range(4)]
        if s == 5: dm = [(lambda q=q: xdma2(0, q)) for q in range(9)]
        if s == 7: dm = [(lambda q=q: xdma2(1, q)) for q in range(9)]
        if s == 7: a(f"s_add_u32 s{S_X2}, s{S_X2}, {32*1152}")
        if s < 8:
            if s + 4 <= 8:
                for d in dm:
                    f = d(); a("s_nop 0"); f()
                dm = []
            a.need(lg=('tab', s+1))
            for jj in range(8):
                a.need(vm=('W', s+1, jj))
                ops = deq_ops(s+1, jj)
                nm = 0 if jj == 0 else 3
                per = len(ops) // (nm+1) if nm else len(ops)
                for k, op in enumerate(ops):
                    a(op)
                    if nm and (k+1) % per == 0 and (k+1)//per <= nm: emit_m(1)
                if jj & 1 and s + 4 <= 8:
                    wload(s+4, jj-1); wload(s+4, jj)
                if dm:
                    f = dm.pop(0)(); emit_m(1); f()
            if s + 4 <= 8: wadv()
            stage_write(s+1)
            if s + 2 <= 8: tab_read(s+2)
            while dm:
                f = dm.pop(0)(); emit_m(1) if M else a("s_nop 0"); f()
            emit_m(99)
            a.need(lg=('sw', s+1))
            a("s_barrier")
            if s in (3, 7): stamp()
        else:
            a(f"s_mul_i32 s{S_T}, s{S_MH}, {18432-8192}")
            for v in (V_A0, V_A1, V_A0H, V_A1H): a(f"v_add_u32 v{v}, s{S_T}, v{v}")
            emit_m(20)
            a.need(lg='all', vm=('X2', 0))
            a("s_barrier")
            x2read(0, 0); x2read(0, 1)
            emit_m(4)
            x2read(0, 2); x2read(0, 3)
            a(f"s_add_u32 s{S_X2}, s{S_X2}, {32*1152}")
            pend = [(lambda q=q: xdma2(2, q)) for q in range(9)]
            for _ in range(8):
                f = pend.pop(0)(); emit_m(1); f()
            assert not M
    stamp()
    def store_block(acc, sreg, pk):
        out = []
        for r in range(4):
            out.append(f"v_cvt_pk_bf16_f32 v{pk+2*r}, v{acc+r}, v{acc+4+r}")
            out.append(f"v_cvt_pk_bf16_f32 v{pk+2*r+1}, v{acc+8+r}, v{acc+12+r}")
            out.append(('st', f"buffer_store_dwordx2 {vr(pk+2*r,2)}, v{V_O+r}, s[{S_O}:{S_O+3}], s{sreg} offen {stflags}"))
        return out
    def emit(op):
        if isinstance(op, tuple): a.vmem(op[1], 'st')
        elif callable(op): op()
        else: a(op)
    NMAX = NIT + 1
    for t in range(NMAX):
        last_small = (t == NIT-1)
        acc = ACC2 + (t & 1)*16
        fill = []
        if t > 0:
            fill += store_block(ACC2 + ((t-1) & 1)*16, S_OB, V_P) + [f"s_add_u32 s{S_OB}, s{S_OB}, {32*9216}"]
        if t < 4:
            fill += store_block(ACC1 + t*16, S_O1, V_P+8) + [f"s_add_u32 s{S_O1}, s{S_O1}, {16*9216}"]
        for g in range(18):
            if g == 16 and t + 1 < NMAX:
                if last_small:
                    a(f"s_cmp_eq_u32 s{S_BIG}, 0")
                    a("s_cbranch_scc1 L_small_tail")
                    saved = (list(a.vm), list(a.lg), a.vm_done, a.lg_done)
                a.need(lg='all', vm=('X2', t+1))
                a("s_barrier")
                x2read(t+1, 0); x2read(t+1, 1)
                if t + 3 < NMAX:
                    if t + 3 == NIT:
                        a(f"s_cmp_eq_u32 s{S_BIG}, 0")
                        a(f"s_cselect_b32 s{S_X2}, {X_BYTES}, s{S_X2}")
                        a(f"s_cselect_b32 s{S_T}, 0, {32*1152}")
                        a(f"s_add_u32 s{S_X2}, s{S_X2}, s{S_T}")
                    else:
                        a(f"s_add_u32 s{S_X2}, s{S_X2}, {32*1152}")
                    pend = [(lambda q=q, t=t: xdma2(t+3, q)) for q in range(9)]
            if g == 17 and t + 1 < NMAX:
                x2read(t+1, 2); x2read(t+1, 3)
            if g + 4 < 18: x2read(t, g+4)
            a.need(lg=('x2', t, g))
            for e in range(4):
                f = None
                if pend and e in (0, 2): f = pend.pop(0)()
                d = acc + e*4
                c = "0" if g == 0 else vr(d)
                a(f"v_mfma_f32_16x16x32_bf16 {vr(d)}, {vr(XF + X2SET(t, g)*4)}, {wfrag(g, e)}, {c}")
                if f: f()
                elif not pend and g >= 2 and fill and e != 3: emit(fill.pop(0))
        assert not fill, (t, len(fill))
        if t in (0, NIT-1): stamp()
    def final(acc):
        a("s_nop 7")
        for op in store_block(acc, S_OB, V_P): emit(op)
    final(ACC2 + ((NMAX-1) & 1)*16)
    a("s_branch L_fin")
    a("L_small_tail:")
    a.vm, a.lg, a.vm_done, a.lg_done = saved
    t = NIT-1
    acc = ACC2 + (t & 1)*16
    for g in (16, 17):
        a.need(lg=('x2', t, g))
        for e in range(4):
            d = acc + e*4
            a(f"v_mfma_f32_16x16x32_bf16 {vr(d)}, {vr(XF + X2SET(t, g)*4)}, {wfrag(g, e)}, {vr(d)}")
    if stamps: nst[0] -= 1; stamp()
    final(acc)
    a("L_fin:")
    if stamps:
        stamp()
        a("s_waitcnt vmcnt(0)")
        stamp()
        a("s_waitcnt lgkmcnt(0)")
        a(f"s_mov_b32 s{S_T}, s62\ns_mov_b32 s{S_T+1}, s63\ns_mov_b32 s{S_T+2}, 0x100000\ns_mov_b32 s{S_T+3}, 0x20000")
        a(f"s_lshl_b32 s4, s{S_MH}, 1\ns_add_u32 s4, s4, s{S_NH}\ns_lshl_b32 s5, s2, 2\ns_add_u32 s4, s4, s5\ns_lshl_b32 s4, s4, 6")
        a("v_mov_b32 v1, s4")
        for i in range(nst[0]):
            a(f"v_mov_b32 v2, s{S_ST+2*i}")
            a(f"buffer_store_dword v2, v1, s[{S_T}:{S_T+3}], 0 offen offset:{4*i}")
        print("stamps:", nst[0], file=sys.stderr)
    a("L_done:")
    txt = a.text()
    pre = ""
    if codepf:
        txt = txt.replace("CODE_LEFT", "L_done-L_pfref")
    return wrap(txt, 256, 256, LDS_SIZE, 512, 256)

if __name__ == "__main__":
    for item in range(252): assert (item*9363) >> 16 == item//7
    import argparse
    p = argparse.ArgumentParser()
    p.add_argument("-o", default="s4b.s")
    p.add_argument("--notrick", action="store_true")
    p.add_argument("--st", default="nt")
    p.add_argument("--stamps", action="store_true")
    p.add_argument("--nopf", action="store_true")
    g = p.parse_args()
    open(g.o, "w").write(gen(trick=not g.notrick, stflags=g.st, stamps=g.stamps, codepf=not g.nopf))
```

```python
import sys, struct
from common import *

def f2h(x): return hex(struct.unpack('<I', struct.pack('<f', x))[0])

class Sched(Asm):
    def __init__(self):
        super().__init__()
        self.vm = []; self.lg = []
        self.vm_done = 0; self.lg_done = 0
    def vmem(self, s, tag=None):
        self(s); self.vm.append(tag)
    def lds(self, s, tag=None):
        self(s); self.lg.append(tag)
    def need(self, vm=None, lg=None):
        parts = []
        if vm is not None:
            tags = vm if isinstance(vm, (list, tuple)) and not isinstance(vm[0], str) else [vm]
            idx = max(max(i for i, t in enumerate(self.vm) if t == tg) for tg in tags)
            if idx >= self.vm_done:
                n = min(len(self.vm) - 1 - idx, 63)
                parts.append(f"vmcnt({n})"); self.vm_done = len(self.vm) - n
        if lg is not None:
            if lg == 'all': idx = len(self.lg) - 1
            else:
                tags = lg if isinstance(lg, (list, tuple)) and not isinstance(lg[0], str) else [lg]
                idx = max(max(i for i, t in enumerate(self.lg) if t == tg) for tg in tags)
            if idx >= self.lg_done:
                n = min(len(self.lg) - 1 - idx, 15)
                parts.append(f"lgkmcnt({n})"); self.lg_done = len(self.lg) - n
        if parts: self("s_waitcnt " + " ".join(parts))

KB = 1024
REG_SZ = 36*KB
P1_BASE = 36*KB; P1_SLOT = 16*KB
STG = 116*KB
TAB = 148*KB
TABA = 156*KB
LDS_SIZE = 158*KB

V_W, V_X, V_A0, V_A1, V_A0H, V_A1H, V_STW, V_STR, V_TAB, V_TABA = 1, 2, 3, 4, 5, 6, 7, 8, 9, 10
V_O = 12
RAW = [16, 48, 80]
V_S, V_C, V_AS = 112, 116, 120
V_P = 128
ACC1 = 144
XF = 208
V_T = 240
W8 = RAW[0]
ACC2 = RAW[1]
NAGPR = 256

S_X, S_W, S_SC, S_Z, S_A, S_O = 16, 20, 24, 28, 32, 36
S_JJ = 40
S_XB = 48
S_X2 = 52
S_OB = 53
S_M0 = 54
S_M02 = 55
S_BIG = 56
S_NH, S_MH, S_CB, S_ROW0 = 57, 58, 59, 60
S_O1 = 61
S_T = 64
S_ST = 72

def wfrag(ks, e):
    if ks < 16:
        b = (ks*4 + e)*4
        return f"a[{b}:{b+3}]"
    b = W8 + ((ks-16)*4 + e)*4
    return f"v[{b}:{b+3}]"
def vr(b, n=4): return f"v[{b}:{b+n-1}]"

def gen(trick=True, stflags="nt", stamps=False, codepf=True, NIT=5, wfl="", xfl=""):
    a = Sched()
    nst = [0]
    def stamp():
        if stamps:
            a(f"s_memtime s[{S_ST+2*nst[0]}:{S_ST+2*nst[0]+1}]"); nst[0] += 1
    SH_S, SH_A = (100, 49) if trick else (0, 0)
    stamp()
    a("s_load_dwordx8 s[4:11], s[0:1], 0")
    a("s_load_dwordx4 s[12:15], s[0:1], 32")
    if stamps: a("s_load_dwordx2 s[62:63], s[0:1], 56")
    a(f"""
    s_and_b32 s{S_T}, s2, 7
    s_lshr_b32 s{S_T+1}, s2, 3
    s_and_b32 s{S_T+2}, s2, 1
    s_add_u32 s{S_T+3}, s{S_T+1}, s{S_T+2}
    s_cmp_ge_u32 s{S_T+3}, {33 if False else 32}
    s_cselect_b32 s{S_T+3}, 1, 0
    """)
    a(f"s_cbranch_scc1 L_done")
    a(f"""
    s_lshr_b32 s{S_T}, s{S_T}, 1
    s_mul_i32 s{S_T}, s{S_T}, 63
    s_lshl_b32 s{S_T+2}, s{S_T+2}, 5
    s_add_u32 s{S_T}, s{S_T}, s{S_T+2}
    s_add_u32 s{S_T}, s{S_T}, s{S_T+1}
    s_mul_i32 s{S_CB}, s{S_T}, 9363
    s_lshr_b32 s{S_CB}, s{S_CB}, 16
    s_mul_i32 s{S_T+1}, s{S_CB}, 7
    s_sub_u32 s{S_T}, s{S_T}, s{S_T+1}
    s_mul_i32 s{S_ROW0}, s{S_T}, 288
    s_add_u32 s{S_ROW0}, s{S_ROW0}, 32
    s_cmp_eq_u32 s{S_T}, 0
    s_cselect_b32 s{S_ROW0}, 0, s{S_ROW0}
    s_cselect_b32 s{S_BIG}, 1, 0
    v_lshrrev_b32 v{V_T}, 6, v0
    v_and_b32 v{V_T+1}, 15, v0
    v_readfirstlane_b32 s{S_T+4}, v{V_T}
    v_bfe_u32 v{V_T+2}, v0, 4, 2
    v_and_b32 v{V_T+3}, 63, v0
    s_nop 0
    s_and_b32 s{S_NH}, s{S_T+4}, 1
    s_lshr_b32 s{S_MH}, s{S_T+4}, 1
    """)
    I, Q, L = V_T+1, V_T+2, V_T+3
    T0, T1 = V_T+4, V_T+5
    a(f"""
    s_lshl_b32 s{S_T}, s{S_CB}, 7
    s_lshl_b32 s{S_T+1}, s{S_NH}, 6
    s_add_u32 s{S_T+1}, s{S_T+1}, s{S_T}
    s_mul_i32 s{S_T+2}, s{S_MH}, {32*18432}
    s_lshl_b32 s{S_T+3}, s{S_T+1}, 2
    s_add_u32 s{S_T+2}, s{S_T+2}, s{S_T+3}
    v_mul_u32_u24 v{V_W}, {8*18432}, v{Q}
    v_lshl_add_u32 v{V_W}, v{I}, 4, v{V_W}
    v_add_u32 v{V_W}, s{S_T+2}, v{V_W}
    s_lshl_b32 s{S_T+3}, s{S_T+1}, 1
    v_lshlrev_b32 v{T0}, 3, v{I}
    v_add_u32 v{T0}, s{S_T+3}, v{T0}
    s_lshl_b32 s{S_T+2}, s{S_MH}, 6
    v_lshlrev_b32 v{T1}, 4, v{Q}
    v_add_u32 v{T1}, s{S_T+2}, v{T1}
    """)
    for j in range(1, 8): a(f"s_mov_b32 s{S_JJ+j}, {j*18432}")
    a(f"""
    v_lshrrev_b32 v{V_T+6}, 3, v{L}
    s_lshl_b32 s{S_T+2}, s{S_NH}, 3
    v_add_u32 v{V_T+6}, s{S_T+2}, v{V_T+6}
    v_lshrrev_b32 v{V_T+7}, 1, v{V_T+6}
    v_xor_b32 v{V_T+7}, v{V_T+7}, v{L}
    v_and_b32 v{V_T+7}, 7, v{V_T+7}
    v_mul_u32_u24 v{V_X}, 1152, v{V_T+6}
    v_lshl_add_u32 v{V_X}, v{V_T+7}, 4, v{V_X}
    s_lshl_b32 s{S_T+2}, s{S_MH}, 6
    s_add_u32 s{S_T+2}, s{S_T+2}, s{S_ROW0}
    s_mul_i32 s{S_XB}, s{S_T+2}, 1152
    s_add_u32 s{S_XB+1}, s{S_XB}, 18432
    s_add_u32 s{S_XB+2}, s{S_XB}, {2*18432}
    s_add_u32 s{S_XB+3}, s{S_XB}, {3*18432}
    s_mul_i32 s{S_O1}, s{S_T+2}, 9216
    s_lshl_b32 s{S_T+2}, s{S_MH}, 4
    s_add_u32 s{S_T+2}, s{S_T+2}, s{S_ROW0}
    s_add_u32 s{S_T+2}, s{S_T+2}, 128
    s_mul_i32 s{S_X2}, s{S_T+2}, 1152
    s_mul_i32 s{S_OB}, s{S_T+2}, 9216
    s_lshl_b32 s{S_T+2}, s{S_NH}, 10
    s_lshl_b32 s{S_M0}, s{S_MH}, 13
    s_add_u32 s{S_M0}, s{S_M0}, s{S_T+2}
    s_mul_i32 s{S_M02}, s{S_MH}, 18432
    s_add_u32 s{S_M02}, s{S_M02}, s{S_T+2}
    """)
    TS, TA = V_T+8, V_T+9
    a(f"""
    v_lshrrev_b32 v{V_T+6}, 5, v0
    v_and_b32 v{V_T+7}, 31, v0
    v_mul_u32_u24 v{TS}, 9216, v{V_T+6}
    v_lshl_add_u32 v{TS}, v{V_T+7}, 3, v{TS}
    s_lshl_b32 s{S_T+2}, s{S_T}, 1
    s_add_u32 s{S_T+2}, s{S_T+2}, 9216
    v_add_u32 v{TS}, s{S_T+2}, v{TS}
    v_lshlrev_b32 v{TA}, 2, v0
    """)
    a("s_waitcnt lgkmcnt(0)")
    srd(a, S_W, 6, W_BYTES); srd(a, S_SC, 8, S_BYTES); srd(a, S_Z, 10, S_BYTES); srd(a, S_A, 12, A_BYTES)
    stamp()
    OWN = V_P
    a.vmem(f"buffer_load_dwordx2 {vr(OWN,2)}, v{T0}, s[{S_SC}:{S_SC+3}], 0 offen", 'own')
    a.vmem(f"buffer_load_dwordx2 {vr(OWN+2,2)}, v{T0}, s[{S_Z}:{S_Z+3}], 0 offen", 'own')
    a.vmem(f"buffer_load_dwordx4 {vr(OWN+4,4)}, v{T1}, s[{S_A}:{S_A+3}], 0 offen", 'own')
    def wload(s, jj):
        so = "0" if jj == 0 else f"s{S_JJ+jj}"
        a.vmem(f"buffer_load_dwordx4 {vr(RAW[s%3]+4*jj)}, v{V_W}, s[{S_W}:{S_W+3}], {so} offen {wfl}", ('W', s, jj))
    def wadv():
        a(f"v_add_u32 v{V_W}, {64*18432}, v{V_W}")
    def xdma1(s, j):
        lds = P1_BASE + ((s+1) % 5)*P1_SLOT + j*2048 - s*128
        a(f"s_add_u32 m0, s{S_M0}, {lds}")
        return lambda: a.vmem(f"buffer_load_dwordx4 v{V_X}, s[{S_X}:{S_X+3}], s{S_XB+j} offen offset:{s*128} lds {xfl}", ('x', s))
    def xdma1_all(s):
        for j in range(4):
            f = xdma1(s, j); a("s_nop 0"); f()
    def xdma2(t, s):
        lds = (t % 3)*REG_SZ + s*2048 - s*128
        a(f"s_add_u32 m0, s{S_M02}, {lds}")
        return lambda: a.vmem(f"buffer_load_dwordx4 v{V_X}, s[{S_X}:{S_X+3}], s{S_X2} offen offset:{s*128} lds {xfl}", ('X2', t))
    for jj in range(8): wload(0, jj)
    wadv()
    srd(a, S_X, 4, X_BYTES)
    xdma1_all(0)
    a.vmem(f"buffer_load_dwordx2 {vr(OWN+8,2)}, v{TS}, s[{S_SC}:{S_SC+3}], 0 offen", 'tab')
    a.vmem(f"buffer_load_dwordx2 {vr(OWN+10,2)}, v{TS}, s[{S_Z}:{S_Z+3}], 0 offen", 'tab')
    a.vmem(f"buffer_load_dword v{OWN+12}, v{TA}, s[{S_A}:{S_A+3}], 0 offen offset:128", 'tab')
    if codepf:
        a(f"s_getpc_b64 s[{S_T+6}:{S_T+7}]")
        a(f"v_lshlrev_b32 v{V_T+10}, 7, v0")
        a(f"v_min_u32 v{V_T+10}, CODE_LEFT, v{V_T+10}")
        a("L_pfref:")
        a.vmem(f"global_load_dword v{V_T+11}, v{V_T+10}, s[{S_T+6}:{S_T+7}]", 'pf')
    for s in (1, 2):
        xdma1_all(s)
        for jj in range(8): wload(s, jj)
        wadv()
    xdma1_all(3)
    srd(a, S_O, 14, O_BYTES)
    a(f"""
    v_lshrrev_b32 v{V_T+6}, 1, v{I}
    v_xor_b32 v{V_T+6}, v{V_T+6}, v{Q}
    v_lshlrev_b32 v{V_T+6}, 4, v{V_T+6}
    v_lshl_add_u32 v{V_A0}, v{I}, 7, v{V_T+6}
    s_lshl_b32 s{S_T+2}, s{S_MH}, 13
    v_add_u32 v{V_A0}, s{S_T+2}, v{V_A0}
    v_xor_b32 v{V_A1}, 64, v{V_A0}
    v_add_u32 v{V_A0H}, 0x10000, v{V_A0}
    v_add_u32 v{V_A1H}, 0x10000, v{V_A1}
    s_lshl_b32 s{S_T+2}, s{S_NH}, 12
    s_add_u32 s{S_T+2}, s{S_T+2}, {STG}
    v_lshlrev_b32 v{V_STR}, 4, v{L}
    v_add_u32 v{V_STR}, s{S_T+2}, v{V_STR}
    s_lshl_b32 s{S_T+2}, s{S_MH}, 13
    v_add_u32 v{V_STW}, s{S_T+2}, v{V_STR}
    s_lshl_b32 s{S_T+2}, s{S_NH}, 8
    s_add_u32 s{S_T+2}, s{S_T+2}, {TAB}
    v_lshlrev_b32 v{V_TAB}, 4, v{I}
    v_add_u32 v{V_TAB}, s{S_T+2}, v{V_TAB}
    s_lshl_b32 s{S_T+2}, s{S_MH}, 7
    s_add_u32 s{S_T+2}, s{S_T+2}, {TABA}
    v_lshlrev_b32 v{V_TABA}, 5, v{Q}
    v_add_u32 v{V_TABA}, s{S_T+2}, v{V_TABA}
    v_mul_u32_u24 v{V_O}, {4*9216}, v{Q}
    v_add_u32 v{V_O}, v{V_O}, v{T0}
    v_add_u32 v{V_O+1}, 9216, v{V_O}
    v_add_u32 v{V_O+2}, {2*9216}, v{V_O}
    v_add_u32 v{V_O+3}, {3*9216}, v{V_O}
    v_lshrrev_b32 v{TS}, 5, v0
    v_and_b32 v{V_T+7}, 31, v0
    v_lshlrev_b32 v{TS}, 10, v{TS}
    v_lshl_add_u32 v{TS}, v{V_T+7}, 4, v{TS}
    v_add_u32 v{TS}, {TAB}, v{TS}
    v_lshlrev_b32 v{TA}, 3, v0
    v_add_u32 v{TA}, {TABA}, v{TA}
    """)
    def unpack_sc(src_s, src_z, dS, dC):
        for p in range(2):
            a(f"v_lshlrev_b32 v{dS+2*p}, 16, v{src_s+p}")
            a(f"v_and_b32 v{dS+2*p+1}, 0xffff0000, v{src_s+p}")
            a(f"v_lshlrev_b32 v{dC+2*p}, 16, v{src_z+p}")
            a(f"v_and_b32 v{dC+2*p+1}, 0xffff0000, v{src_z+p}")
        for e in range(4):
            a(f"v_mul_f32 v{dC+e}, v{dC+e}, v{dS+e}")
        for e in range(4):
            a(f"v_mul_f32 v{dC+e}, {f2h(-2.0**(SH_S-149) if trick else -1.0)}, v{dC+e}")
            if trick: a(f"v_mul_f32 v{dS+e}, {f2h(2.0**SH_S)}, v{dS+e}")
    def unpack_a(src, d, n):
        for p in range(n):
            a(f"v_lshlrev_b32 v{d+2*p}, 16, v{src+p}")
            a(f"v_and_b32 v{d+2*p+1}, 0xffff0000, v{src+p}")
        if trick:
            for p in range(2*n): a(f"v_mul_f32 v{d+p}, {f2h(2.0**(149-SH_S))}, v{d+p}")
    a.need(vm='own')
    stamp()
    unpack_sc(OWN, OWN+2, V_S, V_C)
    unpack_a(OWN+4, V_AS, 4)

    def deq_ops(s, jj):
        r = RAW[s % 3] + 4*jj
        ops = []
        if not trick:
            ops += [f"v_cvt_f32_i32 v{r+e}, v{r+e}" for e in range(4)]
        ops += [f"v_fma_f32 v{r+e}, v{r+e}, v{V_S+e}, v{V_C+e}" for e in range(4)]
        ops += [f"v_mul_f32 v{r+e}, v{r+e}, v{V_AS+jj}" for e in range(4)]
        if jj & 1:
            ops += [f"v_cvt_pk_bf16_f32 v{V_P+4*e+(jj>>1)}, v{r-4+e}, v{r+e}" for e in range(4)]
        return ops
    def stage_write(s):
        for e in range(4):
            a.lds(f"ds_write_b128 v{V_STW}, {vr(V_P+4*e)} offset:{(s&1)*16384 + e*1024}", ('sw', s))
    def tab_read(s):
        a.lds(f"ds_read_b128 {vr(V_S)}, v{V_TAB} offset:{(s-1)*1024}", ('tab', s))
        a.lds(f"ds_read_b128 {vr(V_C)}, v{V_TAB} offset:{(s-1)*1024+512}", ('tab', s))
        a.lds(f"ds_read_b128 {vr(V_AS)}, v{V_TABA} offset:{(s-1)*256}", ('tab', s))
        a.lds(f"ds_read_b128 {vr(V_AS+4)}, v{V_TABA} offset:{(s-1)*256+16}", ('tab', s))
    def xread(dst, kk, off, tag):
        base = (V_A0, V_A1)[kk]
        if off >= 65536: base, off = (V_A0H, V_A1H)[kk], off - 65536
        a.lds(f"ds_read_b128 {vr(dst)}, v{base} offset:{off}", tag)

    a.need(vm='tab')
    stamp()
    unpack_sc(OWN+8, OWN+10, ACC1, ACC1+4)
    unpack_a(OWN+12, ACC1+8, 1)
    a.lds(f"ds_write_b128 v{TS}, {vr(ACC1)}", 'tw')
    a.lds(f"ds_write_b128 v{TS}, {vr(ACC1+4)} offset:512", 'tw')
    a.lds(f"ds_write_b64 v{TA}, {vr(ACC1+8,2)}", 'tw')
    for jj in range(8):
        for op in deq_ops(0, jj): a(op)
        if jj & 1:
            wload(3, jj-1); wload(3, jj)
    wadv()
    stage_write(0)
    a.need(lg='all')
    a("s_barrier")
    stamp()

    def mfma1(s, kk, j, e):
        d = ACC1 + (j*4+e)*4
        c = "0" if (s == 0 and kk == 0) else vr(d)
        a(f"v_mfma_f32_16x16x32_bf16 {vr(d)}, {vr(XF+(kk*4+j)*4)}, {wfrag(2*s+kk, e)}, {c}")
    def p1_reads(s):
        if s == 0: tab_read(1)
        for kk in range(2):
            for e in range(4):
                a.lds(f"ds_read_b128 {wfrag(2*s+kk, e)}, v{V_STR} offset:{(s&1)*16384 + kk*8192 + e*1024}", ('wf', s, kk))
            for j in range(4):
                xread(XF+(kk*4+j)*4, kk, P1_BASE + ((s+1) % 5)*P1_SLOT + j*2048, ('xf', s, kk, j))
    def x2read(t, f):
        xread(XF + X2SET(t, f)*4, f & 1, (t % 3)*REG_SZ + (f >> 1)*2048, ('x2', t, f))
    def X2SET(t, f): return (t*18 + f) % 6

    for s in range(9):
        p1_reads(s)
        M = [(kk, j, e) for kk in range(2) for j in range(4) for e in range(4)]
        def emit_m(n):
            for _ in range(n):
                if not M: return
                kk, j, e = M.pop(0)
                if e == 0: a.need(lg=[('wf', s, kk), ('xf', s, kk, j)])
                mfma1(s, kk, j, e)
        dm = []
        if s + 4 <= 8: dm = [(lambda j=j: xdma1(s+4, j)) for j in range(4)]
        if s == 5: dm = [(lambda q=q: xdma2(0, q)) for q in range(9)]
        if s == 7: dm = [(lambda q=q: xdma2(1, q)) for q in range(9)]
        if s == 7: a(f"s_add_u32 s{S_X2}, s{S_X2}, {32*1152}")
        if s < 8:
            if s + 4 <= 8:
                for d in dm:
                    f = d(); a("s_nop 0"); f()
                dm = []
            a.need(lg=('tab', s+1))
            for jj in range(8):
                a.need(vm=('W', s+1, jj))
                ops = deq_ops(s+1, jj)
                nm = 0 if jj == 0 else 3
                per = len(ops) // (nm+1) if nm else len(ops)
                for k, op in enumerate(ops):
                    a(op)
                    if nm and (k+1) % per == 0 and (k+1)//per <= nm: emit_m(1)
                if jj & 1 and s + 4 <= 8:
                    wload(s+4, jj-1); wload(s+4, jj)
                if dm:
                    f = dm.pop(0)(); emit_m(1); f()
            if s + 4 <= 8: wadv()
            stage_write(s+1)
            if s + 2 <= 8: tab_read(s+2)
            while dm:
                f = dm.pop(0)(); emit_m(1) if M else a("s_nop 0"); f()
            emit_m(99)
            a.need(lg=('sw', s+1))
            a("s_barrier")
            if s in (3, 7): stamp()
        else:
            a(f"s_mul_i32 s{S_T}, s{S_MH}, {18432-8192}")
            for v in (V_A0, V_A1, V_A0H, V_A1H): a(f"v_add_u32 v{v}, s{S_T}, v{v}")
            emit_m(20)
            a.need(lg='all', vm=('X2', 0))
            a("s_barrier")
            x2read(0, 0); x2read(0, 1)
            emit_m(4)
            x2read(0, 2); x2read(0, 3)
            a(f"s_add_u32 s{S_X2}, s{S_X2}, {32*1152}")
            pend = [(lambda q=q: xdma2(2, q)) for q in range(9)]
            for _ in range(8):
                f = pend.pop(0)(); emit_m(1); f()
            assert not M
    stamp()
    def store_block(acc, sreg, pk):
        out = []
        for r in range(4):
            out.append(f"v_cvt_pk_bf16_f32 v{pk+2*r}, v{acc+r}, v{acc+4+r}")
            out.append(f"v_cvt_pk_bf16_f32 v{pk+2*r+1}, v{acc+8+r}, v{acc+12+r}")
            out.append(('st', f"buffer_store_dwordx2 {vr(pk+2*r,2)}, v{V_O+r}, s[{S_O}:{S_O+3}], s{sreg} offen {stflags}"))
        return out
    def emit(op):
        if isinstance(op, tuple): a.vmem(op[1], 'st')
        elif callable(op): op()
        else: a(op)
    NMAX = NIT + 1
    for t in range(NMAX):
        last_small = (t == NIT-1)
        acc = ACC2 + (t & 1)*16
        fill = []
        if t > 0:
            fill += store_block(ACC2 + ((t-1) & 1)*16, S_OB, V_P) + [f"s_add_u32 s{S_OB}, s{S_OB}, {32*9216}"]
        if t < 4:
            fill += store_block(ACC1 + t*16, S_O1, V_P+8) + [f"s_add_u32 s{S_O1}, s{S_O1}, {16*9216}"]
        for g in range(18):
            if g == 16 and t + 1 < NMAX:
                if last_small:
                    a(f"s_cmp_eq_u32 s{S_BIG}, 0")
                    a("s_cbranch_scc1 L_small_tail")
                    saved = (list(a.vm), list(a.lg), a.vm_done, a.lg_done)
                a.need(lg='all', vm=('X2', t+1))
                a("s_barrier")
                x2read(t+1, 0); x2read(t+1, 1)
                if t + 3 < NMAX:
                    if t + 3 == NIT:
                        a(f"s_cmp_eq_u32 s{S_BIG}, 0")
                        a(f"s_cselect_b32 s{S_X2}, {X_BYTES}, s{S_X2}")
                        a(f"s_cselect_b32 s{S_T}, 0, {32*1152}")
                        a(f"s_add_u32 s{S_X2}, s{S_X2}, s{S_T}")
                    else:
                        a(f"s_add_u32 s{S_X2}, s{S_X2}, {32*1152}")
                    pend = [(lambda q=q, t=t: xdma2(t+3, q)) for q in range(9)]
            if g == 17 and t + 1 < NMAX:
                x2read(t+1, 2); x2read(t+1, 3)
            if g + 4 < 18: x2read(t, g+4)
            a.need(lg=('x2', t, g))
            for e in range(4):
                f = None
                if pend and e in (0, 2): f = pend.pop(0)()
                d = acc + e*4
                c = "0" if g == 0 else vr(d)
                a(f"v_mfma_f32_16x16x32_bf16 {vr(d)}, {vr(XF + X2SET(t, g)*4)}, {wfrag(g, e)}, {c}")
                if f: f()
                elif not pend and g >= 2 and fill and e != 3: emit(fill.pop(0))
        assert not fill, (t, len(fill))
        if t in (0, NIT-1): stamp()
    def final(acc):
        a("s_nop 7")
        for op in store_block(acc, S_OB, V_P): emit(op)
    final(ACC2 + ((NMAX-1) & 1)*16)
    a("s_branch L_fin")
    a("L_small_tail:")
    a.vm, a.lg, a.vm_done, a.lg_done = saved
    t = NIT-1
    acc = ACC2 + (t & 1)*16
    for g in (16, 17):
        a.need(lg=('x2', t, g))
        for e in range(4):
            d = acc + e*4
            a(f"v_mfma_f32_16x16x32_bf16 {vr(d)}, {vr(XF + X2SET(t, g)*4)}, {wfrag(g, e)}, {vr(d)}")
    if stamps: nst[0] -= 1; stamp()
    final(acc)
    a("L_fin:")
    if stamps:
        stamp()
        a("s_waitcnt vmcnt(0)")
        stamp()
        a("s_waitcnt lgkmcnt(0)")
        a(f"s_mov_b32 s{S_T}, s62\ns_mov_b32 s{S_T+1}, s63\ns_mov_b32 s{S_T+2}, 0x100000\ns_mov_b32 s{S_T+3}, 0x20000")
        a(f"s_lshl_b32 s4, s{S_MH}, 1\ns_add_u32 s4, s4, s{S_NH}\ns_lshl_b32 s5, s2, 2\ns_add_u32 s4, s4, s5\ns_lshl_b32 s4, s4, 6")
        a("v_mov_b32 v1, s4")
        for i in range(nst[0]):
            a(f"v_mov_b32 v2, s{S_ST+2*i}")
            a(f"buffer_store_dword v2, v1, s[{S_T}:{S_T+3}], 0 offen offset:{4*i}")
        print("stamps:", nst[0], file=sys.stderr)
    a("L_done:")
    txt = a.text()
    pre = ""
    if codepf:
        txt = txt.replace("CODE_LEFT", "L_done-L_pfref")
    return wrap(txt, 256, 256, LDS_SIZE, 512, 256)

if __name__ == "__main__":
    for item in range(252): assert (item*9363) >> 16 == item//7
    import argparse
    p = argparse.ArgumentParser()
    p.add_argument("-o", default="s4b.s")
    p.add_argument("--notrick", action="store_true")
    p.add_argument("--st", default="nt")
    p.add_argument("--stamps", action="store_true")
    p.add_argument("--nopf", action="store_true")
    p.add_argument("--wfl", default="")
    p.add_argument("--xfl", default="")
    g = p.parse_args()
    open(g.o, "w").write(gen(trick=not g.notrick, stflags=g.st, stamps=g.stamps, codepf=not g.nopf, wfl=g.wfl, xfl=g.xfl))
```
